```python
import torch

def _softmax(x, axis=-1):
    return torch.softmax(x, dim=axis)
def _gelu(x):
    return torch.nn.functional.gelu(x, approximate="tanh")
def _silu(x):
    return torch.nn.functional.silu(x)
def _sigmoid(x):
    return torch.sigmoid(x)
def _layernorm(x, axis=-1, eps=1e-5):
    m = x.mean(dim=axis, keepdim=True)
    v = x.var(dim=axis, keepdim=True, unbiased=False)
    return (x - m) / torch.sqrt(v + eps)
def _scatter_add(tgt, idx, src, axis=0):
    return tgt.clone().index_add_(axis, idx, src)
def _segment_sum(src, seg, n):
    out = torch.zeros((n,) + src.shape[1:], dtype=src.dtype)
    return out.index_add_(0, seg, src)
def _pad(x, pw):
    flat = tuple(v for pair in reversed(pw) for v in pair)
    return torch.nn.functional.pad(x, flat)

kernel_name = 'concat_heads__sliding_block__mha_block__prompt'

def setup_inputs():

    _w = (lambda a: (lambda t: t.to(torch.bfloat16) if t.is_floating_point() else t)(torch.as_tensor(a)))
    def _A_setup():
        B, S, D = 1, 2048, 640
        return {
            "x": _w((lambda *s: torch.randn(*s, dtype=torch.bfloat16) * 0.4)(B, S, D)),
            "wqkv": _w((lambda *s: torch.randn(*s, dtype=torch.bfloat16) * 0.4)(D, 3 * D)),
            "wo": _w((lambda *s: torch.randn(*s, dtype=torch.bfloat16) * 0.05)(D, D)),
        }
    _A_in = _A_setup()

    def _B_setup():
        B, S, D, H = 1, 2048, 640, 32
        return {
            "x": _w((lambda *s: torch.randn(*s, dtype=torch.bfloat16) * 0.2)(B, S, D)),
            "wqkv": _w((lambda *s: torch.randn(*s, dtype=torch.bfloat16) * 0.4)(D, 3 * D)),
            "wo": _w((lambda *s: torch.randn(*s, dtype=torch.bfloat16) * 0.1)(D, D)),
        }
    _B_in = _B_setup()

    return {
        "A_x": _A_in["x"],
        "A_wqkv": _A_in["wqkv"],
        "A_wo": _A_in["wo"],
        "B_x": _B_in["x"],
        "B_wqkv": _B_in["wqkv"],
        "B_wo": _B_in["wo"],
    }

def reference(A_x, A_wqkv, A_wo, B_x, B_wqkv, B_wo):
    def _A_ref(x, wqkv, wo):
        B, S, D = x.shape
        H = 32; Dh = D // H; W = 256
        qkv = (lambda x, *d: x.permute(*d))((x @ wqkv).reshape(B, S, 3, H, Dh), 2, 0, 3, 1, 4)
        q, k, v = qkv[0], qkv[1], qkv[2]
        scores = torch.einsum("bhqd,bhkd->bhqk", q, k) * (Dh ** -0.5)
        idx = torch.arange(S)
        mask = (idx[:, None] - idx[None, :] >= 0) & (idx[:, None] - idx[None, :] < W)
        scores = torch.where(mask[None, None], scores, -1e9)
        p = _softmax(scores, axis=-1)
        o = torch.einsum("bhqk,bhkd->bhqd", p, v)
        return (lambda x, *d: x.permute(*d))(o, 0, 2, 1, 3).reshape(B, S, D) @ wo

    def _B_ref(x, wqkv, wo):
        B, S, D = x.shape
        H = 32
        Dh = D // H
        qkv = (lambda x, *d: x.permute(*d))((x @ wqkv).reshape(B, S, 3, H, Dh), 2, 0, 3, 1, 4)
        q, k, v = qkv[0], qkv[1], qkv[2]
        scores = torch.einsum("bhqd,bhkd->bhqk", q, k) * (Dh ** -0.5)
        p = _softmax(scores, axis=-1)
        o = torch.einsum("bhqk,bhkd->bhqd", p, v)
        return (lambda x, *d: x.permute(*d))(o, 0, 2, 1, 3).reshape(B, S, D) @ wo

    a = _A_ref(A_x, A_wqkv, A_wo)
    b = _B_ref(B_x, B_wqkv, B_wo)
    return torch.concatenate([a, b], axis=-1)
```

```python
import struct
class Asm:
    def __init__(self):
        self.lines = []
        self.uid = 0
    def __call__(self, s, c=None):
        self.lines.append("  " + s + (f"    ; {c}" if c else ""))
    def label(self, l):
        self.lines.append(l + ":")
    def raw(self, s):
        self.lines.append(s)
    def comment(self, s):
        self.lines.append("  ; " + s)
    def newlabel(self, p="L"):
        self.uid += 1
        return f"{p}_{self.uid}"
    def text(self):
        return "\n".join(self.lines) + "\n"
def f32hex(x):
    return "0x%08x" % struct.unpack("<I", struct.pack("<f", x))[0]
def vr(a, n):
    return f"v[{a}:{a+n-1}]" if n > 1 else f"v{a}"
def sr(a, n):
    return f"s[{a}:{a+n-1}]" if n > 1 else f"s{a}"
def kernel_begin(A, name):
    A.raw(f".globl {name}")
    A.raw(".p2align 8")
    A.raw(f".type {name},@function")
    A.label(name)
def kernel_desc(name, vgpr, sgpr=96, accum=None):
    if accum is None: accum = (vgpr + 3) // 4 * 4
    return f""".p2align 6
.amdhsa_kernel {name}
  .amdhsa_next_free_vgpr {vgpr}
  .amdhsa_next_free_sgpr {sgpr}
  .amdhsa_accum_offset {accum}
  .amdhsa_group_segment_fixed_size 0
  .amdhsa_kernarg_size 72
  .amdhsa_user_sgpr_count 2
  .amdhsa_user_sgpr_kernarg_segment_ptr 1
  .amdhsa_system_sgpr_workgroup_id_x 1
.end_amdhsa_kernel
"""

WS_TS = 0x1C00000
class TS:
    enable = False
def ts_begin(A):
    if not TS.enable: return
    A("s_memrealtime s[96:97]")
    A("s_memtime s[98:99]")
    A("s_waitcnt lgkmcnt(0)")
    A("s_mov_b32 s64, s96")
    A("s_mov_b32 s65, s98")
    for i in range(66, 96): A(f"s_mov_b32 s{i}, 0")
def ts_stamp(A, idx):
    if not TS.enable: return
    A("s_memtime s[98:99]")
    A("s_waitcnt lgkmcnt(0)")
    A(f"s_mov_b32 s{66+idx}, s98")
def ts_stamp_dyn(A, base_idx, sidx):
    if not TS.enable: return
    A("s_memtime s[98:99]")
    A("s_waitcnt lgkmcnt(0)")
    A(f"s_mov_b32 m0, s{sidx}")
    A("s_nop 0")
    A(f"s_movreld_b32 s{66+base_idx}, s98")
def ts_dump(A, kidx, srd, wave_sgpr, vt=2):
    if not TS.enable: return
    A("s_waitcnt vmcnt(0)")
    A("s_memrealtime s[96:97]")
    A("s_memtime s[98:99]")
    A("s_waitcnt lgkmcnt(0)")
    A("s_mov_b32 s95, s96")
    A("s_mov_b32 s94, s98")
    A("s_lshl_b32 s96, s2, 4")
    A(f"s_add_u32 s96, s96, s{wave_sgpr}")
    A("s_lshl_b32 s96, s96, 7")
    A(f"s_add_u32 s96, s96, {WS_TS + kidx*0x100000}")
    A("s_mov_b64 exec, 1")
    A(f"v_mov_b32 v{vt+4}, 0")
    for q in range(8):
        for j in range(4):
            A(f"v_mov_b32 v{vt+j}, s{64+4*q+j}")
        A(f"buffer_store_dwordx4 v[{vt}:{vt+3}], v{vt+4}, s[{srd}:{srd+3}], s96 offen offset:{16*q}")
        A("s_nop 1")
```

```python
from asmlib import *
from k_qkv import WS_Q, QT, WS_KV, KVT, WS_O, WS_SIZE
TI = 2624
SLOT = 8 * TI
RING = 0
AREA = 3 * SLOT
LDS_BYTES = AREA + 16 * TI
OOB = 0x30000
OT = 40960
NEG = -1.0e30
OPT = dict()

V_LANE = 1
Q1 = [8, 14]; Q2 = [12, 18]
NEGM = [20, 36]
S = [52, 68]
P = 84
O = [92, 108]
K1 = 124; K2 = 128; V0 = 132; V1 = 136
AK = 140; AK2 = 141; AV = 142
BK = 143; BK2 = 144; BV = 145
T0 = 146
NV = 160

def mfma_qk1(A, Sd, q1, C):
    A(f"v_mfma_f32_32x32x16_bf16 v[{Sd}:{Sd+15}], v[{K1}:{K1+3}], v[{q1}:{q1+3}], {C}")
def mfma_qk2(A, Sd, q2):
    A(f"v_mfma_f32_32x32x8_bf16 v[{Sd}:{Sd+15}], v[{K2}:{K2+1}], v[{q2}:{q2+1}], v[{Sd}:{Sd+15}]")
def mfma_pv(A, Od, V, Pp):
    A(f"v_mfma_f32_32x32x16_bf16 v[{Od}:{Od+15}], v[{V}:{V+3}], v[{Pp}:{Pp+3}], v[{Od}:{Od+15}]")
def ld_k(A, off):
    A(f"ds_read_b64 v[{K1}:{K1+1}], v{AK} offset:{off}")
    A(f"ds_read_b64 v[{K1+2}:{K1+3}], v{AK} offset:{off+256}")
    A(f"ds_read_b64 v[{K2}:{K2+1}], v{AK2} offset:{off}")
def ld_v(A, reg, off, g):
    A(f"ds_read_b128 v[{reg}:{reg+3}], v{AV} offset:{off+1280+672*g}")
def rowmax16(A, Sd, dst, acc=None):
    A(f"v_max3_f32 v{dst}, v{Sd}, v{Sd+1}, v{Sd+2}" if acc is None else f"v_max3_f32 v{dst}, v{Sd}, v{Sd+1}, v{acc}")
    start = 3 if acc is None else 2
    i = start
    while i + 1 < 16:
        A(f"v_max3_f32 v{dst}, v{Sd+i}, v{Sd+i+1}, v{dst}")
        i += 2
    if i < 16:
        A(f"v_max_f32 v{dst}, v{Sd+i}, v{dst}")
def halves_max(A, r, t1, t2):
    A(f"v_mov_b32 v{t1}, v{r}")
    A(f"v_mov_b32 v{t2}, v{r}")
    A("s_nop 1")
    A(f"v_permlane32_swap_b32 v{t1}, v{t2}")
    A("s_nop 1")
    A(f"v_max_f32 v{r}, v{t1}, v{t2}")

def load_q(A, x, tile_sgpr, br):
    A(f"s_add_u32 s60, s{tile_sgpr}, {br*64}")
    A(f"s_mul_i32 s60, s60, {QT}")
    A(f"s_add_u32 s60, s60, s31", "+ head*1280")
    if WS_Q: A(f"s_add_u32 s60, s60, {WS_Q}")
    A(f"buffer_load_dwordx2 v[{Q1[x]}:{Q1[x]+1}], v{T0}, s[12:15], s60 offen")
    A(f"buffer_load_dwordx2 v[{Q1[x]+2}:{Q1[x]+3}], v{T0}, s[12:15], s60 offen offset:256")
    A(f"buffer_load_dwordx2 v[{Q2[x]}:{Q2[x]+1}], v{T0+1}, s[12:15], s60 offen")

def store_o(A, x, tile_sgpr, br, Oreg):
    t = T0 + 2
    A(f"v_mov_b32 v{t}, v{Oreg+8}")
    A(f"v_mov_b32 v{t+1}, v{Oreg+8}")
    A("s_nop 1")
    A(f"v_permlane32_swap_b32 v{t}, v{t+1}")
    A("s_nop 1")
    A(f"v_rcp_f32 v{t+1}, v{t+1}")
    A("s_nop 0")
    for r in range(12):
        A(f"v_mul_f32 v{Oreg+r}, v{Oreg+r}, v{t+1}")
    d = t + 2
    for j in range(6):
        A(f"v_cvt_pk_bf16_f32 v{d+j}, v{Oreg+2*j}, v{Oreg+2*j+1}")
    A(f"s_add_u32 s60, s{tile_sgpr}, {br*64}")
    A(f"s_mul_i32 s60, s60, {OT}")
    A(f"s_add_u32 s60, s60, {WS_O}")
    A(f"s_add_u32 s61, s60, s33", "leftover base")
    A(f"s_add_u32 s60, s60, s32", "+ head*1024")
    A(f"buffer_store_dwordx4 v[{d}:{d+3}], v{T0+12}, s[12:15], s60 offen")
    A(f"buffer_store_dwordx2 v[{d+4}:{d+5}], v{T0+13}, s[12:15], s61 offen")

def gen_attn(A, name="attn_kernel"):
    kernel_begin(A, name)
    A("s_cmp_ge_u32 s2, 256")
    A(f"s_cbranch_scc1 {name}_END")
    ts_begin(A)
    A("s_load_dwordx2 s[24:25], s[0:1], 64", "ws")
    A("v_lshrrev_b32 v2, 6, v0")
    A(f"v_and_b32 v{V_LANE}, 63, v0", "lane")
    A("v_readfirstlane_b32 s26, v2", "wave id")
    A("s_and_b32 s27, s2, 7", "xcd")
    A("s_lshr_b32 s28, s2, 3", "j")
    A("s_lshr_b32 s29, s28, 3")
    A("s_lshl_b32 s27, s27, 2")
    A("s_add_u32 s27, s27, s29", "head")
    A("s_and_b32 s28, s28, 7", "qb")
    A("s_mul_i32 s31, s27, 1280", "head*1280")
    A("s_waitcnt lgkmcnt(0)")
    A("s_mov_b32 s12, s24")
    A("s_and_b32 s13, s25, 0xffff")
    A(f"s_mov_b32 s14, {WS_SIZE}")
    A("s_mov_b32 s15, 0x20000")
    A("s_cmp_lt_u32 s26, 8")
    A(f"s_cbranch_scc1 {name}_compute")
    A("s_sub_u32 s30, s26, 8", "lw")
    A("s_mul_i32 s34, s27, 1344")
    A("s_add_u32 s34, s34, 40960", "V part base (rel. record)")
    A("s_sub_u32 s34, s34, 1280", "minus 80 units")
    for i in range(3):
        A(f"v_add_u32 v2, {64*i}, v{V_LANE}")
        A("v_lshlrev_b32 v3, 4, v2", "u*16")
        A("v_add_u32 v4, s31, v3", "K source")
        A("v_add_u32 v5, s34, v3", "V source")
        A("v_cmp_gt_u32 vcc, 80, v2")
        A("s_nop 1")
        A(f"v_cndmask_b32 v{10+i}, v5, v4, vcc")
    A("s_mov_b32 s36, -1")
    A("s_mov_b32 s37, 0xf", "s[36:37] = lanes < 36")
    def dma_tile(ssrc, sdst):
        A(f"s_mov_b32 m0, s{sdst}")
        A("s_nop 0")
        A(f"buffer_load_dwordx4 v10, s[12:15], s{ssrc} offen lds")
        A(f"s_add_u32 m0, s{sdst}, 1024")
        A("s_nop 0")
        A(f"buffer_load_dwordx4 v11, s[12:15], s{ssrc} offen lds")
        A(f"s_add_u32 m0, s{sdst}, 2048")
        A("s_mov_b64 exec, s[36:37]")
        A(f"buffer_load_dwordx4 v12, s[12:15], s{ssrc} offen lds")
        A("s_mov_b64 exec, -1")
    A("s_lshl_b32 s38, s28, 3")
    A("s_lshl_b32 s39, s30, 2")
    A("s_add_u32 s38, s38, s39")
    A("s_sub_i32 s38, s38, 8", "first tile")
    A("s_max_i32 s38, s38, 0")
    A(f"s_mul_i32 s40, s38, {KVT}")
    A(f"s_add_u32 s40, s40, {WS_KV}")
    A(f"s_mul_i32 s41, s39, {TI}")
    A(f"s_add_u32 s41, s41, {AREA}")
    A("s_mov_b32 s42, 0")
    A.label(f"{name}_ldA")
    dma_tile(40, 41)
    A(f"s_add_u32 s40, s40, {KVT}")
    A(f"s_add_u32 s41, s41, {TI}")
    A("s_add_u32 s42, s42, 1")
    A("s_cmp_lt_u32 s42, 4")
    A(f"s_cbranch_scc1 {name}_ldA")
    A(f"s_add_u32 s40, s30, 64")
    A(f"s_mul_i32 s40, s40, {KVT}")
    A(f"s_add_u32 s40, s40, {WS_KV}", "source of tile lw, branch 1")
    A(f"s_mul_i32 s43, s30, {TI}", "lds offset of tile lw in half")
    A("s_mov_b32 s44, 0", "slot base")
    def dma_chunk():
        A("s_add_u32 s41, s44, s43")
        dma_tile(40, 41)
        A(f"s_add_u32 s45, s40, {32*KVT}")
        A(f"s_add_u32 s41, s41, {4*TI}")
        dma_tile(45, 41)
        A(f"s_add_u32 s40, s40, {4*KVT}")
        A(f"s_add_u32 s44, s44, {SLOT}")
        A(f"s_cmp_eq_u32 s44, {3*SLOT}")
        A("s_cselect_b32 s44, 0, s44")
    A("s_mov_b32 s42, 0")
    A.label(f"{name}_ldB0")
    dma_chunk()
    A("s_add_u32 s42, s42, 1")
    A("s_cmp_lt_u32 s42, 3")
    A(f"s_cbranch_scc1 {name}_ldB0")
    A("s_waitcnt vmcnt(18)")
    A("s_barrier", "B0: A area landed")
    A("s_waitcnt vmcnt(12)")
    A("s_barrier", "B1: chunk 0 landed")
    A("s_waitcnt vmcnt(6)")
    A("s_barrier", "R0: chunk 1 landed")
    A("s_mov_b32 s42, 1")
    A.label(f"{name}_ldR")
    A("s_waitcnt vmcnt(0)")
    A("s_barrier", "R_c, c=1..6")
    A("s_cmp_ge_u32 s42, 6")
    A(f"s_cbranch_scc1 {name}_ldDone")
    dma_chunk()
    A("s_add_u32 s42, s42, 1")
    A(f"s_branch {name}_ldR")
    A.label(f"{name}_ldDone")
    A("s_barrier", "C0")
    A("s_barrier", "C1")
    A("s_endpgm")
    A.label(f"{name}_compute")
    L = V_LANE
    A(f"v_and_b32 v2, 31, v{L}", "l%32")
    A(f"v_lshrrev_b32 v3, 5, v{L}", "h")
    A(f"v_lshlrev_b32 v4, 3, v2", "key*8")
    A(f"v_lshl_add_u32 v{BK}, v3, 9, v4")
    A(f"v_add_u32 v5, 1024, v4")
    A(f"v_mov_b32 v6, {OOB}")
    A(f"v_cmp_eq_u32 vcc, 0, v3")
    A("s_nop 1")
    A(f"v_cndmask_b32 v{BK2}, v6, v5, vcc")
    A(f"v_mul_u32_u24 v5, 336, v3")
    A(f"v_lshl_add_u32 v5, v2, 4, v5")
    A(f"v_cmp_gt_u32 vcc, 21, v2")
    A("s_nop 1")
    A(f"v_cndmask_b32 v{BV}, v6, v5, vcc")
    A(f"v_mov_b32 v{T0}, v{BK}")
    A(f"v_mov_b32 v6, 0x40000000")
    A(f"v_add_u32 v5, 1024, v4")
    A(f"v_cmp_eq_u32 vcc, 0, v3")
    A("s_nop 1")
    A(f"v_cndmask_b32 v{T0+1}, v6, v5, vcc")
    A(f"v_lshlrev_b32 v4, 4, v2")
    A(f"v_lshl_add_u32 v{T0+12}, v3, 9, v4")
    A(f"v_cndmask_b32 v{T0+13}, v6, v4, vcc")
    A("s_lshl_b32 s32, s27, 10", "head*1024")
    A("s_lshr_b32 s33, s27, 2")
    A("s_lshl_b32 s33, s33, 10")
    A("s_bfe_u32 s34, s27, 0x10001", "(head>>1)&1")
    A("s_lshl_b32 s34, s34, 9")
    A("s_add_u32 s33, s33, s34")
    A("s_and_b32 s34, s27, 1")
    A("s_lshl_b32 s34, s34, 3")
    A("s_add_u32 s33, s33, s34")
    A("s_add_u32 s33, s33, 32768", "leftover offset")
    A("s_lshl_b32 s35, s28, 3")
    A("s_add_u32 s35, s35, s26", "T")
    load_q(A, 0, 35, 0)
    A(f"v_lshlrev_b32 v4, 2, v3", "4h")
    A(f"v_sub_u32 v4, v2, v4", "ql - 4h")
    A(f"v_mov_b32 v5, {f32hex(NEG)}")
    for r in range(16):
        c = 8 * (r // 4) + r % 4
        A(f"v_cmp_le_i32 vcc, {c}, v4")
        A("s_nop 1")
        A(f"v_cndmask_b32 v{NEGM[1]+r}, v5, 0, vcc")
    for r in range(16):
        A(f"v_mov_b32 v{O[0]+r}, 0")
    A("s_sub_i32 s36, 8, s35")
    A("s_max_i32 s36, s36, 0", "jstart")
    A(f"s_add_u32 s37, s26, s36")
    A(f"s_mul_i32 s37, s37, {TI}")
    A(f"s_add_u32 s37, s37, {AREA}", "lds base of first tile")
    A("s_waitcnt vmcnt(0)")
    A("s_barrier", "B0")
    ts_stamp(A, 0)
    mx = T0 + 2
    A(f"v_mov_b32 v{mx}, {f32hex(NEG)}")
    A("s_mov_b32 s38, s36", "j")
    A("s_mov_b32 s39, s37")
    A.label(f"{name}_A1")
    A(f"v_add_u32 v{AK}, s39, v{BK}")
    A(f"v_add_u32 v{AK2}, s39, v{BK2}")
    ld_k(A, 0)
    A("s_cmp_eq_u32 s38, 0")
    A(f"s_cbranch_scc1 {name}_A1hi")
    A("s_cmp_eq_u32 s38, 8")
    A(f"s_cbranch_scc1 {name}_A1lo")
    A("s_waitcnt lgkmcnt(0)")
    mfma_qk1(A, S[0], Q1[0], "0")
    A(f"s_branch {name}_A1go")
    A.label(f"{name}_A1hi")
    for r in range(16):
        A(f"v_sub_f32 v{S[1]+r}, {'v5'}, v{NEGM[1]+r}")
    A("s_waitcnt lgkmcnt(0)")
    mfma_qk1(A, S[0], Q1[0], f"v[{S[1]}:{S[1]+15}]")
    A(f"s_branch {name}_A1go")
    A.label(f"{name}_A1lo")
    A("s_waitcnt lgkmcnt(0)")
    mfma_qk1(A, S[0], Q1[0], f"v[{NEGM[1]}:{NEGM[1]+15}]")
    A.label(f"{name}_A1go")
    mfma_qk2(A, S[0], Q2[0])
    A("s_nop 15")
    rowmax16(A, S[0], mx, acc=mx)
    A(f"s_add_u32 s39, s39, {TI}")
    A("s_add_u32 s38, s38, 1")
    A("s_cmp_le_u32 s38, 8")
    A(f"s_cbranch_scc1 {name}_A1")
    halves_max(A, mx, T0+3, T0+4)
    for r in range(16):
        A(f"v_sub_f32 v{NEGM[0]+r}, 0, v{mx}")
    A("s_mov_b32 s38, s36", "j")
    A("s_mov_b32 s39, s37")
    A.label(f"{name}_A2")
    A(f"v_add_u32 v{AK}, s39, v{BK}")
    A(f"v_add_u32 v{AK2}, s39, v{BK2}")
    A(f"v_add_u32 v{AV}, s39, v{BV}")
    ld_k(A, 0)
    ld_v(A, V0, 0, 0)
    ld_v(A, V1, 0, 1)
    A("s_cmp_eq_u32 s38, 0")
    A(f"s_cbranch_scc1 {name}_A2hi")
    A("s_cmp_eq_u32 s38, 8")
    A(f"s_cbranch_scc1 {name}_A2lo")
    A("s_waitcnt lgkmcnt(2)")
    mfma_qk1(A, S[0], Q1[0], f"v[{NEGM[0]}:{NEGM[0]+15}]")
    A(f"s_branch {name}_A2go")
    A.label(f"{name}_A2hi")
    for r in range(16):
        A(f"v_sub_f32 v{S[1]+r}, v5, v{NEGM[1]+r}")
        A(f"v_add_f32 v{S[1]+r}, v{S[1]+r}, v{NEGM[0]+r}")
    A("s_waitcnt lgkmcnt(2)")
    mfma_qk1(A, S[0], Q1[0], f"v[{S[1]}:{S[1]+15}]")
    A(f"s_branch {name}_A2go")
    A.label(f"{name}_A2lo")
    for r in range(16):
        A(f"v_add_f32 v{S[1]+r}, v{NEGM[1]+r}, v{NEGM[0]+r}")
    A("s_waitcnt lgkmcnt(2)")
    mfma_qk1(A, S[0], Q1[0], f"v[{S[1]}:{S[1]+15}]")
    A.label(f"{name}_A2go")
    mfma_qk2(A, S[0], Q2[0])
    A("s_nop 15")
    for i in range(16):
        A(f"v_exp_f32 v{S[0]+i}, v{S[0]+i}")
    for j in range(8):
        A(f"v_cvt_pk_bf16_f32 v{P+j}, v{S[0]+2*j}, v{S[0]+2*j+1}")
    A("s_waitcnt lgkmcnt(0)")
    mfma_pv(A, O[0], V0, P)
    mfma_pv(A, O[0], V1, P+4)
    A(f"s_add_u32 s39, s39, {TI}")
    A("s_add_u32 s38, s38, 1")
    A("s_cmp_le_u32 s38, 8")
    A(f"s_cbranch_scc1 {name}_A2")
    A("s_nop 15")
    store_o(A, 0, 35, 0, O[0])
    ts_stamp(A, 1)
    A("s_and_b32 s36, s26, 3", "g")
    A("s_lshr_b32 s37, s26, 2", "kh")
    A("s_lshl_b32 s38, s28, 3")
    A("s_lshl_b32 s39, s36, 1")
    A("s_add_u32 s38, s38, s39", "X tile")
    A("s_add_u32 s39, s38, 1", "Y tile")
    load_q(A, 0, 38, 1)
    load_q(A, 1, 39, 1)
    for x in range(2):
        for r in range(16):
            A(f"v_mov_b32 v{O[x]+r}, 0")
    for r in range(8):
        A(f"v_mov_b32 v{P+r}, 0")
    for r in range(4):
        A(f"v_mov_b32 v{V1+r}, 0")
    A(f"s_mul_i32 s40, s37, {4*TI}", "half offset in slot")
    A("s_barrier", "B1: chunk 0 landed")
    A(f"v_mov_b32 v{AK}, v{BK}")
    A(f"v_mov_b32 v{AK2}, v{BK2}")
    ld_k(A, 0)
    A("s_waitcnt vmcnt(0) lgkmcnt(0)")
    for x in range(2):
        mfma_qk1(A, S[x], Q1[x], "0")
    for x in range(2):
        mfma_qk2(A, S[x], Q2[x])
    A("s_nop 15")
    for x in range(2):
        rowmax16(A, S[x], T0+2+x)
    for x in range(2):
        halves_max(A, T0+2+x, T0+4, T0+5)
        for r in range(16):
            A(f"v_sub_f32 v{NEGM[x]+r}, 0, v{T0+2+x}")
    A(f"v_add_u32 v{AK}, s40, v{BK}")
    A(f"v_add_u32 v{AK2}, s40, v{BK2}")
    A(f"v_add_u32 v{AV}, s40, v{BV}")
    ld_k(A, 0)
    ld_v(A, V0, 0, 0)
    A("s_waitcnt lgkmcnt(1)")
    mfma_qk1(A, S[0], Q1[0], f"v[{NEGM[0]}:{NEGM[0]+15}]")
    mfma_qk2(A, S[0], Q2[0])
    A("s_nop 15")
    A("s_mov_b32 s41, 0", "chunk")
    A("s_mov_b32 s42, 0", "slot base")
    ts_stamp(A, 2)
    A.raw(".p2align 6")
    A.label(f"{name}_Bloop")
    for t in range(4):
        for x in range(2):
            cur, nxt = x, 1 - x
            Sc, Sn = S[cur], S[nxt]
            ex = lambda i: A(f"v_exp_f32 v{Sc+i}, v{Sc+i}")
            cv = lambda j: A(f"v_cvt_pk_bf16_f32 v{P+j}, v{Sc+2*j}, v{Sc+2*j+1}")
            ex(0); ex(1)
            if x == 1: A("s_waitcnt lgkmcnt(3)", "V1(t)")
            mfma_pv(A, O[nxt], V1, P+4)
            if x == 0:
                ld_v(A, V1, t*TI, 1)
            ex(2); ex(3); ex(4); ex(5)
            if x == 1: A("s_waitcnt lgkmcnt(0)", "K(t+1)")
            mfma_qk1(A, Sn, Q1[nxt], f"v[{NEGM[nxt]}:{NEGM[nxt]+15}]")
            ex(6); ex(7)
            for j in range(4): cv(j)
            mfma_qk2(A, Sn, Q2[nxt])
            if x == 0:
                if t == 3:
                    A(f"s_add_u32 s42, s42, {SLOT}")
                    A(f"s_cmp_eq_u32 s42, {3*SLOT}")
                    A("s_cselect_b32 s42, 0, s42")
                    A("s_add_u32 s43, s42, s40")
                    A("s_cmp_eq_u32 s41, 7")
                    A(f"s_cbranch_scc1 {name}_nobar")
                    A("s_barrier", "R_c")
                    A.label(f"{name}_nobar")
                    A(f"v_add_u32 v{AK}, s43, v{BK}")
                    A(f"v_add_u32 v{AK2}, s43, v{BK2}")
                    ld_k(A, 0)
                else:
                    ld_k(A, (t+1)*TI)
            ex(8); ex(9); ex(10); ex(11)
            if x == 0: A("s_waitcnt lgkmcnt(4)", "V0(t)")
            mfma_pv(A, O[cur], V0, P)
            if x == 1:
                if t == 3:
                    A(f"v_add_u32 v{AV}, s43, v{BV}")
                    ld_v(A, V0, 0, 0)
                else:
                    ld_v(A, V0, (t+1)*TI, 0)
            for i in range(12, 16): ex(i)
            for j in range(4, 8): cv(j)
    A("s_add_u32 s41, s41, 1")
    A("s_cmp_lt_u32 s41, 8")
    A(f"s_cbranch_scc1 {name}_Bloop")
    A("s_nop 1")
    mfma_pv(A, O[1], V1, P+4)
    A("s_waitcnt lgkmcnt(0)")
    ts_stamp(A, 3)
    A("s_barrier", "C0: everyone done reading the ring")
    A("s_lshl_b32 s44, s36, 13")
    A(f"v_lshlrev_b32 v2, 4, v{L}", "lane*16")
    A("v_add_u32 v2, s44, v2")
    A("s_cmp_eq_u32 s37, 0")
    A(f"s_cbranch_scc1 {name}_c0")
    A("s_nop 7")
    for x in range(2):
        for q in range(4):
            A(f"ds_write_b128 v2, v[{O[x]+4*q}:{O[x]+4*q+3}] offset:{(x*4+q)*1024}")
    A("s_waitcnt lgkmcnt(0)")
    A("s_barrier", "C1")
    ts_dump(A, 1, 12, 26, vt=2)
    A("s_endpgm")
    A.label(f"{name}_c0")
    A("s_barrier", "C1")
    for x in range(2):
        for q in range(4):
            A(f"ds_read_b128 v[{S[x]+4*q}:{S[x]+4*q+3}], v2 offset:{(x*4+q)*1024}")
    A("s_waitcnt lgkmcnt(0)")
    for x in range(2):
        for r in range(12):
            A(f"v_add_f32 v{O[x]+r}, v{O[x]+r}, v{S[x]+r}")
    store_o(A, 0, 38, 1, O[0])
    store_o(A, 1, 39, 1, O[1])
    ts_dump(A, 1, 12, 26, vt=2)
    A.label(f"{name}_END")
    A("s_endpgm")
    return kernel_desc(name, NV, 100)
```

```python
from asmlib import *
from k_qkv import WS_O, WS_SIZE
OT = 40960
KS = 4
STG = KS * 5120 + 2 * KS * 1024
NSTG = 5
LDS_BYTES = STG * NSTG
NC = 10
OPT = dict()

def gen_out(A, name="out_kernel"):
    kernel_begin(A, name)
    A("s_cmp_ge_u32 s2, 256")
    A(f"s_cbranch_scc1 {name}_END")
    ts_begin(A)
    A("s_load_dwordx2 s[16:17], s[0:1], 16", "A_wo")
    A("s_load_dwordx2 s[18:19], s[0:1], 40", "B_wo")
    A("s_load_dwordx4 s[20:23], s[0:1], 48", "out, dbg")
    A("s_load_dwordx2 s[24:25], s[0:1], 64", "ws")
    A("v_lshrrev_b32 v2, 6, v0")
    A("v_and_b32 v1, 63, v0", "lane")
    A("v_readfirstlane_b32 s26, v2", "wave id")
    A("s_and_b32 s39, s2, 7", "xcd")
    A("s_lshr_b32 s38, s2, 3", "j 0..31")
    A("s_lshr_b32 s27, s39, 2", "br")
    A("s_and_b32 s28, s39, 3")
    A("s_lshl_b32 s28, s28, 3")
    A("s_lshr_b32 s29, s38, 2")
    A("s_add_u32 s28, s28, s29", "rb 0..31")
    A("s_and_b32 s29, s38, 3", "cb 0..3")
    A("s_waitcnt lgkmcnt(0)")
    A("s_mov_b32 s12, s24")
    A("s_and_b32 s13, s25, 0xffff")
    A(f"s_mov_b32 s14, {WS_SIZE}")
    A("s_mov_b32 s15, 0x20000")
    A(f"s_cmp_lt_u32 s26, {NC}")
    A(f"s_cbranch_scc1 {name}_compute")
    A(f"s_sub_u32 s30, s26, {NC}")
    A("s_cmp_eq_u32 s27, 0")
    A("s_cselect_b32 s8, s16, s18")
    A("s_cselect_b32 s9, s17, s19")
    A("s_and_b32 s9, s9, 0xffff")
    A("s_mov_b32 s10, 819200")
    A("s_mov_b32 s11, 0x20000")
    A("s_movk_i32 s50, 3277")
    for i in range(5):
        A(f"v_add_u32 v2, {64*i}, v1", "U")
        A("v_mul_u32_u24 v3, s50, v2")
        A("v_lshrrev_b32 v3, 16, v3", "rho = U/20")
        A("v_mul_u32_u24 v4, 20, v3")
        A("v_sub_u32 v4, v2, v4", "c")
        A("v_lshlrev_b32 v4, 4, v4")
        A("v_and_b32 v5, 3, v3", "r")
        A("v_bfe_u32 v6, v3, 2, 1", "e")
        A("v_lshrrev_b32 v7, 3, v3", "h")
        A("v_lshl_add_u32 v8, v6, 3, v5")
        A("v_lshl_add_u32 v8, v7, 2, v8")
        A("v_mul_u32_u24 v8, 1280, v8")
        A(f"v_add_u32 v{10+i}, v8, v4")
        A("v_mul_u32_u24 v8, 40, v7")
        A("v_mul_u32_u24 v9, 20, v6")
        A("v_add3_u32 v8, v8, v9, v5")
        A("v_add_u32 v8, 16, v8")
        A("v_mul_u32_u24 v8, 1280, v8")
        A(f"v_add_u32 v{15+i}, v8, v4")
    A("v_lshlrev_b32 v20, 4, v1", "lane*16")
    A("s_mul_i32 s31, s29, 320", "cb*320")
    A("s_lshl_b32 s32, s27, 6")
    A("s_lshl_b32 s33, s28, 1")
    A("s_add_u32 s32, s32, s33")
    A(f"s_mul_i32 s32, s32, {OT}")
    A(f"s_add_u32 s32, s32, {WS_O}")
    A("s_lshl_b32 s33, s30, 10")
    A("s_add_u32 s32, s32, s33", "O src for kstep lw")
    A("s_mov_b32 s34, 0", "stage idx being loaded")
    A("s_mov_b32 s35, 0", "lds stage base")
    A("s_mul_i32 s36, s30, 5120", "lds W offset in stage")
    A("s_lshl_b32 s37, s30, 10")
    A(f"s_add_u32 s37, s37, {KS*5120}", "lds O offset in stage")
    def dma():
        A("s_lshl_b32 s40, s34, 2")
        A("s_add_u32 s40, s40, s30", "ks")
        A("s_add_u32 s41, s35, s36")
        A("s_cmp_ge_u32 s40, 32")
        lab = A.newlabel(f"{name}_left"); lab2 = A.newlabel(f"{name}_wdone")
        A(f"s_cbranch_scc1 {lab}")
        A("s_mul_i32 s42, s40, 25600")
        A("s_add_u32 s42, s42, s31")
        for i in range(5):
            A(f"s_add_u32 m0, s41, {i*1024}")
            A("s_nop 0")
            A(f"buffer_load_dwordx4 v{10+i}, s[8:11], s42 offen lds")
        A(f"s_branch {lab2}")
        A.label(lab)
        A("s_sub_u32 s42, s40, 32")
        A("s_mul_i32 s42, s42, 102400")
        A("s_add_u32 s42, s42, s31")
        for i in range(5):
            A(f"s_add_u32 m0, s41, {i*1024}")
            A("s_nop 0")
            A(f"buffer_load_dwordx4 v{15+i}, s[8:11], s42 offen lds")
        A.label(lab2)
        A("s_add_u32 m0, s35, s37")
        A("s_nop 0")
        A("buffer_load_dwordx4 v20, s[12:15], s32 offen lds")
        A(f"s_add_u32 s42, s32, {OT}")
        A(f"s_add_u32 m0, m0, {KS*1024}")
        A("s_nop 0")
        A("buffer_load_dwordx4 v20, s[12:15], s42 offen lds")
        A(f"s_add_u32 s32, s32, {KS*1024}")
        A("s_add_u32 s34, s34, 1")
        A(f"s_add_u32 s35, s35, {STG}")
        A(f"s_cmp_eq_u32 s35, {NSTG*STG}")
        A("s_cselect_b32 s35, 0, s35")
    A.label(f"{name}_pre")
    dma()
    A(f"s_cmp_lt_u32 s34, {NSTG-1}")
    A(f"s_cbranch_scc1 {name}_pre")
    A("s_mov_b32 s38, 0")
    A.label(f"{name}_ldl")
    A("s_cmp_ge_u32 s38, 7")
    A(f"s_cbranch_scc1 {name}_tail")
    A(f"s_waitcnt vmcnt({7*(NSTG-2)})")
    A("s_barrier")
    A("s_cmp_ge_u32 s34, 10")
    A(f"s_cbranch_scc1 {name}_noissue")
    dma()
    A.label(f"{name}_noissue")
    A("s_add_u32 s38, s38, 1")
    A(f"s_branch {name}_ldl")
    A.label(f"{name}_tail")
    A("s_waitcnt vmcnt(14)")
    A("s_barrier")
    A("s_waitcnt vmcnt(7)")
    A("s_barrier")
    A("s_waitcnt vmcnt(0)")
    A("s_barrier")
    A("s_endpgm")
    A.label(f"{name}_compute")
    A("s_mov_b32 s8, s20")
    A("s_and_b32 s9, s21, 0xffff")
    A("s_mov_b32 s10, 5242880")
    A("s_mov_b32 s11, 0x20000")
    A("s_lshr_b32 s30, s26, 1", "ct 0..4")
    A("s_and_b32 s31, s26, 1", "rt")
    A("v_lshrrev_b32 v3, 5, v1", "h")
    A("v_bfe_u32 v4, v1, 2, 2", "r")
    A("v_lshl_add_u32 v5, v3, 3, v4")
    A("v_mul_u32_u24 v5, 320, v5")
    A("v_bfe_u32 v6, v1, 4, 1")
    A("v_lshl_add_u32 v5, v6, 5, v5")
    A("v_and_b32 v6, 3, v1")
    A("v_lshl_add_u32 v5, v6, 3, v5")
    A("s_lshl_b32 s39, s30, 6")
    A("v_add_u32 v10, s39, v5", "W base")
    A("s_lshl_b32 s39, s31, 12")
    A(f"s_add_u32 s39, s39, {KS*5120}")
    A("v_lshlrev_b32 v5, 4, v1")
    A("v_add_u32 v11, s39, v5", "O base")
    for r in range(32, 48):
        A(f"v_mov_b32 v{r}, 0")
    A("s_mov_b32 s37, 0")
    A("s_mov_b32 s38, 0")
    ts_stamp(A, 0)
    A.raw(".p2align 6")
    A.label(f"{name}_loop")
    A("v_add_u32 v12, s37, v10")
    A("v_add_u32 v13, s37, v11")
    A("s_barrier")
    for k in range(KS):
        b = 16 + 8 * (k % 2) if False else 48 + 8 * k
        A(f"ds_read_b64_tr_b16 v[{b}:{b+1}], v12 offset:{k*5120}")
        A(f"ds_read_b64_tr_b16 v[{b+2}:{b+3}], v12 offset:{k*5120+1280}")
        A(f"ds_read_b128 v[{b+4}:{b+7}], v13 offset:{k*1024}")
    for k in range(KS):
        b = 48 + 8 * k
        A(f"s_waitcnt lgkmcnt({3*(KS-1-k)})")
        A(f"v_mfma_f32_32x32x16_bf16 v[32:47], v[{b}:{b+3}], v[{b+4}:{b+7}], v[32:47]")
    A(f"s_add_u32 s37, s37, {STG}")
    A(f"s_cmp_eq_u32 s37, {NSTG*STG}")
    A("s_cselect_b32 s37, 0, s37")
    A("s_add_u32 s38, s38, 1")
    A("s_cmp_lt_u32 s38, 10")
    A(f"s_cbranch_scc1 {name}_loop")
    ts_stamp(A, 1)
    A("s_lshl_b32 s39, s28, 6")
    A("s_lshl_b32 s40, s31, 5")
    A("s_add_u32 s39, s39, s40")
    A("v_and_b32 v2, 31, v1")
    A("v_add_u32 v2, s39, v2")
    A("s_movk_i32 s41, 2560")
    A("v_mul_lo_u32 v2, v2, s41")
    A("v_lshrrev_b32 v3, 5, v1")
    A("v_lshl_add_u32 v2, v3, 4, v2")
    A("s_mul_i32 s39, s27, 1280")
    A("s_mul_i32 s40, s29, 320")
    A("s_add_u32 s39, s39, s40")
    A("s_lshl_b32 s40, s30, 6")
    A("s_add_u32 s39, s39, s40")
    A("s_nop 7")
    for p in range(2):
        d = 16 + 4 * p
        a = 2 * p
        A(f"v_cvt_pk_bf16_f32 v{d}, v{32+4*a}, v{32+4*a+1}")
        A(f"v_cvt_pk_bf16_f32 v{d+1}, v{32+4*a+2}, v{32+4*a+3}")
        A(f"v_cvt_pk_bf16_f32 v{d+2}, v{32+4*a+4}, v{32+4*a+5}")
        A(f"v_cvt_pk_bf16_f32 v{d+3}, v{32+4*a+6}, v{32+4*a+7}")
        A("s_nop 1")
        A(f"v_permlane32_swap_b32 v{d}, v{d+2}")
        A(f"v_permlane32_swap_b32 v{d+1}, v{d+3}")
        A("s_nop 1")
        A(f"buffer_store_dwordx4 v[{d}:{d+3}], v2, s[8:11], s39 offen offset:{32*p}")
    ts_dump(A, 2, 12, 26, vt=24)
    A.label(f"{name}_END")
    A("s_endpgm")
    return kernel_desc(name, 96, 100)
```

```python
from asmlib import *
import math
WS_Q = 0
QT = 40960
WS_KV = 2 * 64 * QT
KVT = 83968
WS_O = 16777216
WS_SIZE = 0x2000000
SCALE = (20 ** -0.5) * math.log2(math.e)
OPT = dict(nodma=False, nomfma=False, nolds=False)

def gen_qkv(A, name="qkv_kernel"):
    kernel_begin(A, name)
    STG = 49152
    A("s_cmp_ge_u32 s2, 240")
    A(f"s_cbranch_scc1 {name}_END")
    ts_begin(A)
    A("s_load_dwordx4 s[16:19], s[0:1], 0", "A_x, A_wqkv")
    A("s_load_dwordx4 s[20:23], s[0:1], 24", "B_x, B_wqkv")
    A("s_load_dwordx2 s[24:25], s[0:1], 64", "ws")
    A("v_lshrrev_b32 v2, 6, v0")
    A("v_and_b32 v1, 63, v0", "lane")
    A("v_readfirstlane_b32 s26, v2", "wave id")
    A("s_and_b32 s39, s2, 7", "xcd")
    A("s_lshr_b32 s38, s2, 3", "j 0..29")
    A("s_lshr_b32 s27, s39, 2", "br")
    A("s_and_b32 s28, s39, 3", "row pair")
    A("s_lshl_b32 s28, s28, 1")
    A("s_cmp_ge_u32 s38, 15")
    A("s_cselect_b32 s39, 1, 0")
    A("s_add_u32 s28, s28, s39", "rb 0..7")
    A("s_mul_i32 s39, s39, 15")
    A("s_sub_u32 s29, s38, s39", "cb 0..14")
    A("s_cmp_lt_u32 s26, 8")
    A(f"s_cbranch_scc1 {name}_compute")
    A("s_sub_u32 s26, s26, 8")
    A("v_lshrrev_b32 v2, 3, v1")
    A("v_mul_u32_u24 v2, 1280, v2")
    A("v_and_b32 v3, 7, v1")
    A("v_lshrrev_b32 v4, 4, v1")
    A("v_xor_b32 v3, v3, v4")
    A("v_lshl_add_u32 v10, v3, 4, v2", "vx0")
    A("v_xor_b32 v3, 4, v3")
    A("v_lshl_add_u32 v11, v3, 4, v2", "vx1")
    A("v_mul_u32_u24 v2, 3840, v4")
    A("v_and_b32 v3, 15, v1")
    A("v_lshlrev_b32 v5, 2, v4")
    A("v_xor_b32 v3, v3, v5")
    A("v_lshl_add_u32 v12, v3, 4, v2", "vw")
    A("s_lshl_b32 s32, s28, 8")
    A("s_lshl_b32 s39, s26, 6")
    A("s_add_u32 s32, s32, s39")
    A("s_mul_i32 s32, s32, 1280", "sX = (rb*256+64lw)*1280")
    A("s_mul_i32 s33, s26, 61440", "16lw*3840")
    A("s_lshl_b32 s39, s29, 8")
    A("s_add_u32 s33, s33, s39", "sW")
    A("s_lshl_b32 s34, s26, 13", "mX = 8lw*1024")
    A("s_lshl_b32 s35, s26, 12")
    A("s_add_u32 s35, s35, 32768", "mW")
    A("s_mov_b32 s36, 0", "dma stage base")
    A("s_waitcnt lgkmcnt(0)")
    A("s_cmp_eq_u32 s27, 0")
    A("s_cselect_b32 s4, s16, s20")
    A("s_cselect_b32 s5, s17, s21")
    A("s_cselect_b32 s8, s18, s22")
    A("s_cselect_b32 s9, s19, s23")
    A("s_and_b32 s5, s5, 0xffff")
    A("s_and_b32 s9, s9, 0xffff")
    A("s_mov_b32 s6, 2621440")
    A("s_mov_b32 s7, 0x20000")
    A("s_mov_b32 s10, 2457600")
    A("s_mov_b32 s11, 0x20000")
    if TS.enable:
        A("s_mov_b32 s12, s24")
        A("s_and_b32 s13, s25, 0xffff")
        A(f"s_mov_b32 s14, {WS_SIZE}")
        A("s_mov_b32 s15, 0x20000")
        A("s_add_u32 s63, s26, 8")
    ts_stamp(A, 0)
    def dma():
        A("s_add_u32 s42, s36, s34")
        A("s_add_u32 s44, s36, s35")
        for ii in range(4):
            A(f"s_add_u32 m0, s44, {ii*1024}" if ii else "s_mov_b32 m0, s44")
            A(f"s_add_u32 s43, s33, {ii*15360}")
            A(f"buffer_load_dwordx4 v12, s[8:11], s43 offen lds")
        for ii in range(8):
            A(f"s_add_u32 m0, s42, {ii*1024}" if ii else "s_mov_b32 m0, s42")
            A(f"s_add_u32 s43, s32, {ii*10240}")
            A(f"buffer_load_dwordx4 v{10+ii%2}, s[4:7], s43 offen lds")
        A("s_add_u32 s32, s32, 128")
        A("s_add_u32 s33, s33, 245760")
        A(f"s_add_u32 s36, s36, {STG}")
        A(f"s_cmp_eq_u32 s36, {3*STG}")
        A("s_cselect_b32 s36, 0, s36")
    A("s_mov_b32 s38, 0")
    A.label(f"{name}_ld_pre")
    dma()
    ts_stamp_dyn(A, 1, 38)
    A("s_add_u32 s38, s38, 1")
    A("s_cmp_lt_u32 s38, 2")
    A(f"s_cbranch_scc1 {name}_ld_pre")
    A("s_mov_b32 s38, 0")
    A.label(f"{name}_ld_loop")
    A("s_cmp_eq_u32 s38, 9")
    A(f"s_cbranch_scc1 {name}_ld_w0")
    A("s_waitcnt vmcnt(12)")
    ts_stamp_dyn(A, 3, 38)
    A("s_barrier")
    A("s_cmp_ge_u32 s38, 8")
    A(f"s_cbranch_scc1 {name}_ld_skip")
    if not OPT["nodma"]: dma()
    A.label(f"{name}_ld_skip")
    A("s_add_u32 s38, s38, 1")
    A(f"s_branch {name}_ld_loop")
    A.label(f"{name}_ld_w0")
    A("s_waitcnt vmcnt(0)")
    A("s_barrier")
    ts_dump(A, 1, 12, 63, vt=28)
    A("s_endpgm")
    A.label(f"{name}_compute")
    A("s_mul_i32 s30, s29, 52")
    A("s_lshr_b32 s30, s30, 8", "type = cb/5")
    A("s_mul_i32 s39, s30, 5")
    A("s_sub_u32 s31, s29, s39", "cj = cb%5")
    A("s_and_b32 s45, s26, 1", "fh")
    A("s_lshr_b32 s46, s26, 1", "rq")
    A("v_and_b32 v2, 31, v1", "l%32")
    A("v_lshrrev_b32 v3, 5, v1", "h")
    A("v_bfe_u32 v4, v1, 1, 3", "((l%32)/2)%8")
    A("v_xor_b32 v4, v4, v3", "h^s")
    A("s_lshl_b32 s39, s46, 6")
    A("v_add_u32 v5, s39, v2")
    A("v_lshlrev_b32 v5, 7, v5", "(rq*64+l%32)*128")
    for kk in range(4):
        A(f"v_xor_b32 v6, {2*kk}, v4")
        A(f"v_lshl_add_u32 v{13+kk}, v6, 4, v5")
    A("v_bfe_u32 v4, v1, 2, 2", "r")
    A("v_lshl_add_u32 v5, v3, 3, v4", "8h+r")
    A("v_lshlrev_b32 v5, 8, v5")
    A("v_bfe_u32 v6, v1, 4, 1", "G%2")
    A("v_lshl_add_u32 v5, v6, 5, v5")
    A("v_and_b32 v6, 3, v1", "c")
    A("v_lshl_add_u32 v5, v6, 3, v5")
    A("v_add_u32 v5, 32768, v5")
    A("s_lshl_b32 s39, s45, 1", "2fh")
    for ul in range(2):
        A(f"s_add_u32 s43, s39, {ul}")
        A(f"v_xor_b32 v6, s43, v4")
        A(f"v_lshl_add_u32 v{17+ul}, v6, 6, v5")
    for r in range(48, 128):
        A(f"v_mov_b32 v{r}, 0")
    A("s_mov_b32 s37, 0", "compute stage base")
    A("s_mov_b32 s38, 0", "step")
    A("s_waitcnt lgkmcnt(0)")
    A("s_mov_b32 s12, s24")
    A("s_and_b32 s13, s25, 0xffff")
    A(f"s_mov_b32 s14, {WS_SIZE}")
    A("s_mov_b32 s15, 0x20000")
    ts_stamp(A, 0)
    A("s_cmp_eq_u32 s30, 2")
    A(f"s_cbranch_scc1 {name}_V")
    def loads(buf, kk):
        if OPT["nolds"]: return
        b = 32 + 16 * buf
        for ul in range(2):
            A(f"ds_read_b64_tr_b16 v[{b+4*ul}:{b+4*ul+1}], v{23+ul} offset:{kk*4096}")
            A(f"ds_read_b64_tr_b16 v[{b+4*ul+2}:{b+4*ul+3}], v{23+ul} offset:{kk*4096+1024}")
        for rt in range(2):
            A(f"ds_read_b128 v[{b+8+4*rt}:{b+8+4*rt+3}], v{19+kk} offset:{rt*4096}")
    def mfmas(buf, vtype):
        if OPT["nomfma"]: return
        b = 32 + 16 * buf
        for ul in range(2):
            for rt in range(2):
                acc = 64 + 16 * (ul * 2 + rt)
                W = f"v[{b+4*ul}:{b+4*ul+3}]"; X = f"v[{b+8+4*rt}:{b+8+4*rt+3}]"
                a, bb = (X, W) if vtype else (W, X)
                A(f"v_mfma_f32_32x32x16_bf16 v[{acc}:{acc+15}], {a}, {bb}, v[{acc}:{acc+15}]")
    def mainloop(vtype):
        tag = f"{name}_{'V' if vtype else 'QK'}"
        A.raw(".p2align 6")
        A.label(f"{tag}_loop")
        for i in range(4):
            A(f"v_add_u32 v{19+i}, s37, v{13+i}")
        for i in range(2):
            A(f"v_add_u32 v{23+i}, s37, v{17+i}")
        A("s_barrier")
        if TS.enable and OPT.get("loopts"): ts_stamp_dyn(A, 1, 38)
        loads(0, 0)
        mfmas(1, vtype)
        loads(1, 1)
        A("s_waitcnt lgkmcnt(6)")
        mfmas(0, vtype)
        loads(0, 2)
        A("s_waitcnt lgkmcnt(6)")
        mfmas(1, vtype)
        loads(1, 3)
        A("s_waitcnt lgkmcnt(6)")
        mfmas(0, vtype)
        A(f"s_add_u32 s37, s37, {STG}")
        A(f"s_cmp_eq_u32 s37, {3*STG}")
        A("s_cselect_b32 s37, 0, s37")
        A("s_add_u32 s38, s38, 1")
        A("s_cmp_lt_u32 s38, 10")
        A("s_waitcnt lgkmcnt(0)")
        A(f"s_cbranch_scc1 {tag}_loop")
        mfmas(1, vtype)
    mainloop(False)
    ts_stamp(A, 12)
    A(f"s_mov_b32 s40, {f32hex(SCALE)}")
    A("s_cmp_eq_u32 s30, 0")
    A("s_cselect_b32 s40, s40, 1.0")
    A("s_mov_b32 s41, s40")
    A(f"s_mov_b32 s47, {KVT}")
    A(f"s_cselect_b32 s47, {QT}, s47", "tile record stride")
    A(f"s_cselect_b32 s48, {WS_Q}, {WS_KV}")
    A("s_lshl_b32 s39, s27, 6")
    A("s_lshl_b32 s43, s28, 3")
    A("s_add_u32 s39, s39, s43")
    A("s_lshl_b32 s43, s46, 1")
    A("s_add_u32 s39, s39, s43")
    A("s_mul_i32 s39, s39, s47")
    A("s_add_u32 s48, s48, s39", "soffset rt=0")
    A("s_add_u32 s49, s48, s47", "soffset rt=1")
    A("s_lshl_b32 s39, s31, 5")
    A("s_lshl_b32 s43, s45, 4")
    A("s_add_u32 s39, s39, s43")
    A("v_lshrrev_b32 v3, 5, v1")
    A("v_add_u32 v3, s39, v3")
    A("v_lshlrev_b32 v3, 8, v3")
    A("v_and_b32 v2, 31, v1")
    A("v_lshl_add_u32 v25, v2, 3, v3")
    A("s_nop 7")
    n = 0
    for ul in range(2):
        for rt in range(2):
            acc = 64 + 16 * (ul * 2 + rt)
            for a in range(4):
                r = acc + 4 * a
                d = 32 + 2 * n; n += 1
                A(f"v_pk_mul_f32 v[{r}:{r+1}], v[{r}:{r+1}], s[40:41]")
                A(f"v_pk_mul_f32 v[{r+2}:{r+3}], v[{r+2}:{r+3}], s[40:41]")
                A(f"v_cvt_pk_bf16_f32 v{d}, v{r}, v{r+1}")
                A(f"v_cvt_pk_bf16_f32 v{d+1}, v{r+2}, v{r+3}")
                A(f"buffer_store_dwordx2 v[{d}:{d+1}], v25, s[12:15], s{48+rt} offen offset:{(ul*8+2*a)*256}")
    ts_dump(A, 0, 12, 26, vt=28)
    A("s_endpgm")
    A.label(f"{name}_V")
    mainloop(True)
    ts_stamp(A, 12)
    A("s_lshl_b32 s39, s27, 6")
    A("s_lshl_b32 s43, s28, 3")
    A("s_add_u32 s39, s39, s43")
    A("s_lshl_b32 s43, s46, 1")
    A("s_add_u32 s39, s39, s43")
    A(f"s_mul_i32 s39, s39, {KVT}")
    A(f"s_add_u32 s48, s39, {WS_KV}")
    A(f"s_add_u32 s49, s48, {KVT}")
    A("s_lshl_b32 s39, s31, 7")
    A("s_lshl_b32 s43, s45, 6")
    A("s_add_u32 s39, s39, s43", "cj*128+fh*64")
    A("v_and_b32 v2, 31, v1")
    A("v_lshrrev_b32 v3, 5, v1")
    A("v_mul_u32_u24 v3, 336, v3")
    A("v_add_u32 v3, 40960, v3")
    A("s_movk_i32 s50, 3277")
    A("s_mov_b32 s51, 0x40000000")
    for ul in range(2):
        A(f"s_add_u32 s43, s39, {32*ul}")
        A("v_add_u32 v4, s43, v2", "F")
        A("v_mul_u32_u24 v5, s50, v4")
        A("v_lshrrev_b32 v5, 16, v5", "head")
        A("v_mul_u32_u24 v6, 20, v5")
        A("v_sub_u32 v6, v4, v6", "d")
        A("v_mul_u32_u24 v5, 1344, v5")
        A("v_add_u32 v5, v5, v3")
        A(f"v_lshl_add_u32 v{25+ul}, v6, 4, v5")
        A("v_cmp_eq_u32 vcc, 0, v6")
        A(f"v_add_u32 v7, 320, v{25+ul}")
        A("v_mov_b32 v8, s51")
        A(f"v_cndmask_b32 v{27+ul}, v8, v7, vcc")
    for i in range(4):
        A(f"v_mov_b32 v{20+i}, 0x3f803f80")
    n = 0
    for ul in range(2):
        for rt in range(2):
            acc = 64 + 16 * (ul * 2 + rt)
            for g in range(2):
                d = 32 + 4 * n; n += 1
                for j in range(4):
                    A(f"v_cvt_pk_bf16_f32 v{d+j}, v{acc+8*g+2*j}, v{acc+8*g+2*j+1}")
                A(f"buffer_store_dwordx4 v[{d}:{d+3}], v{25+ul}, s[12:15], s{48+rt} offen offset:{g*672}")
                A(f"buffer_store_dwordx4 v[20:23], v{27+ul}, s[12:15], s{48+rt} offen offset:{g*672}")
    ts_dump(A, 0, 12, 26, vt=4)
    A.label(f"{name}_END")
    A("s_endpgm")
    return kernel_desc(name, 128, 100)
```

```python
import sys
from asmlib import *
import k_qkv, k_attn, k_out
HEADER = """; Kernarg layout (72 bytes): A_x, A_wqkv, A_wo, B_x, B_wqkv, B_wo, d_out, d_debug, d_ws
"""
def build(parts, fname):
    A = Asm()
    launches = []
    descs = []
    for (gen, name, grid, block, lds) in parts:
        launches.append(f"; @launch kernel={name} grid=({grid},1,1) block=({block},1,1) lds={lds}")
    A.raw(HEADER + "\n".join(launches))
    A.raw('.amdgcn_target "amdgcn-amd-amdhsa--gfx950"')
    A.raw(".text")
    done = set()
    for (gen, name, grid, block, lds) in parts:
        if name in done: continue
        done.add(name)
        descs.append(gen(A, name))
    A.raw('.section .rodata,"a"')
    for d in descs: A.raw(d)
    open(fname, "w").write(A.text())
if __name__ == "__main__":
    out = sys.argv[1]
    for a in sys.argv[2:]:
        if a == "ts": TS.enable = True
        elif "." in a:
            m, o = a.split(".")
            {"qkv": k_qkv, "attn": k_attn, "out": k_out}[m].OPT[o] = True
    parts = [(k_qkv.gen_qkv, "qkv_kernel", 240, 768, 147456),
             (k_attn.gen_attn, "attn_kernel", 256, 768, k_attn.LDS_BYTES),
             (k_out.gen_out, "out_kernel", 256, 896, k_out.LDS_BYTES)]
    build(parts, out)
```
